```python
import torch

def _softmax(x, axis=-1):
    return torch.softmax(x, dim=axis)
def _gelu(x):
    return torch.nn.functional.gelu(x, approximate="tanh")
def _silu(x):
    return torch.nn.functional.silu(x)
def _sigmoid(x):
    return torch.sigmoid(x)
def _layernorm(x, axis=-1, eps=1e-5):
    m = x.mean(dim=axis, keepdim=True)
    v = x.var(dim=axis, keepdim=True, unbiased=False)
    return (x - m) / torch.sqrt(v + eps)
def _scatter_add(tgt, idx, src, axis=0):
    return tgt.clone().index_add_(axis, idx, src)
def _segment_sum(src, seg, n):
    out = torch.zeros((n,) + src.shape[1:], dtype=src.dtype)
    return out.index_add_(0, seg, src)
def _pad(x, pw):
    flat = tuple(v for pair in reversed(pw) for v in pair)
    return torch.nn.functional.pad(x, flat)

kernel_name = 'recurrent_scan__linear_kernel_hedgehog__glu_gated_geglu__prompt'

def setup_inputs():

    _w = (lambda a: (lambda t: t.to(torch.bfloat16) if t.is_floating_point() else t)(torch.as_tensor(a)))
    def _A_setup():
        B, S, D, H = 1, 2048, 448, 16
        Dh = D // H
        return {
            "x": _w((lambda *s: torch.randn(*s, dtype=torch.bfloat16) * 0.05)(B, S, D)),
            "wqkv": _w((lambda *s: torch.randn(*s, dtype=torch.bfloat16) * 0.8)(D, 3 * D)),
            "w_phi": _w((lambda *s: torch.randn(*s, dtype=torch.bfloat16) * 0.8)(H, Dh, Dh) * (Dh ** -0.5)),
            "wo": _w((lambda *s: torch.randn(*s, dtype=torch.bfloat16) * 0.8)(D, D)),
        }
    _A_in = _A_setup()

    def _B_setup():
        B, S, Dm, Df = 1, 2048, 448, 1792
        return {
            "x": _w((lambda *s: torch.randn(*s, dtype=torch.bfloat16) * 0.05)(B, S, Dm)),
            "w_gate": _w((lambda *s: torch.randn(*s, dtype=torch.bfloat16) * 0.2)(Dm, Df) * (Dm ** -0.5)),
            "w_up": _w((lambda *s: torch.randn(*s, dtype=torch.bfloat16) * 0.2)(Dm, Df) * (Dm ** -0.5)),
            "w_down": _w((lambda *s: torch.randn(*s, dtype=torch.bfloat16) * 0.2)(Df, Dm) * (Df ** -0.5)),
        }
    _B_in = _B_setup()

    return {
        "A_x": _A_in["x"],
        "A_wqkv": _A_in["wqkv"],
        "A_w_phi": _A_in["w_phi"],
        "A_wo": _A_in["wo"],
        "B_x": _B_in["x"],
        "B_w_gate": _B_in["w_gate"],
        "B_w_up": _B_in["w_up"],
        "B_w_down": _B_in["w_down"],
    }

def reference(A_x, A_wqkv, A_w_phi, A_wo, B_x, B_w_gate, B_w_up, B_w_down):
    def _A_ref(x, wqkv, w_phi, wo):
        B, S, D = x.shape
        H = 16; Dh = D // H
        qkv = (lambda x, *d: x.permute(*d))((x @ wqkv).reshape(B, S, 3, H, Dh), 2, 0, 3, 1, 4)
        q, k, v = qkv[0], qkv[1], qkv[2]
        pq = torch.einsum("bhsd,hdf->bhsf", q, w_phi)
        pk = torch.einsum("bhsd,hdf->bhsf", k, w_phi)
        phi_q = torch.concatenate([_softmax(pq, axis=-1), _softmax(-pq, axis=-1)], axis=-1)
        phi_k = torch.concatenate([_softmax(pk, axis=-1), _softmax(-pk, axis=-1)], axis=-1)
        kv = torch.einsum("bhsf,bhsd->bhfd", phi_k, v)
        z  = torch.einsum("bhsf->bhf", phi_k)
        num = torch.einsum("bhqf,bhfd->bhqd", phi_q, kv)
        den = torch.einsum("bhqf,bhf->bhq", phi_q, z)[..., None] + 1e-6
        o = num / den
        return (lambda x, *d: x.permute(*d))(o, 0, 2, 1, 3).reshape(B, S, D) @ wo

    def _B_ref(x, w_gate, w_up, w_down):
        g = torch.einsum("bsd,df->bsf", x, w_gate)
        u = torch.einsum("bsd,df->bsf", x, w_up)
        h = _gelu(g) * u
        return torch.einsum("bsf,fd->bsd", h, w_down)

    x = A_x
    xn = _layernorm(x, axis=-1)
    s = _A_ref(xn, A_wqkv, A_w_phi, A_wo)
    g = _silu(_B_ref(xn, B_w_gate, B_w_up, B_w_down))
    return x + s * g
```

```python
import re

def vr(a, n=1):
    return f'v{a}' if n == 1 else f'v[{a}:{a+n-1}]'
def sr(a, n=1):
    return f's{a}' if n == 1 else f's[{a}:{a+n-1}]'

class Stream:
    def __init__(self, out=None):
        self.out = [] if out is None else out
        self.vm = []
        self.lg = []
    def fork(self):
        s = Stream(self.out); s.vm = list(self.vm); s.lg = list(self.lg); return s
    def e(self, txt):
        for l in txt.strip().split('\n'):
            l = l.strip()
            if l: self.out.append(l)
    def vmem(self, txt, tag=None):
        self.e(txt); self.vm.append(tag)
        assert len(self.vm) <= 63, 'vmcnt overflow'
    def lds(self, txt, tag=None):
        if len(self.lg) >= 15:
            self.e('s_waitcnt lgkmcnt(14)'); self.lg = self.lg[len(self.lg)-14:]
        self.e(txt); self.lg.append(tag)
    def _idx(self, q, tags):
        if not isinstance(tags, (list, tuple, set)): tags = [tags]
        idx = -1
        for i, t in enumerate(q):
            if t in tags: idx = i
        return idx
    def wait(self, vm=None, lg=None):
        parts = []
        if vm == 'all':
            parts.append('vmcnt(0)'); self.vm = []
        elif vm is not None:
            i = self._idx(self.vm, vm)
            if i >= 0:
                parts.append(f'vmcnt({len(self.vm)-1-i})'); self.vm = self.vm[i+1:]
        if lg == 'all':
            parts.append('lgkmcnt(0)'); self.lg = []
        elif lg is not None:
            i = self._idx(self.lg, lg)
            if i >= 0:
                parts.append(f'lgkmcnt({len(self.lg)-1-i})'); self.lg = self.lg[i+1:]
        if parts: self.e('s_waitcnt ' + ' '.join(parts))

_reg = re.compile(r'^(-|\|)?(abs\()?([vsa])(\d+|\[(\d+):(\d+)\])')
def regs_of(op):
    op = op.strip()
    if op in ('vcc', 'vcc_lo', 'vcc_hi'): return {('s', 'vcc')}
    if op in ('exec', 'exec_lo', 'exec_hi'): return {('s', 'exec')}
    if op == 'm0': return {('s', 'm0')}
    m = _reg.match(op)
    if not m: return set()
    k = m.group(3)
    if m.group(5) is not None:
        return {(k, i) for i in range(int(m.group(5)), int(m.group(6))+1)}
    return {(k, int(m.group(4)))}
TRANS = ('v_exp_f32', 'v_log_f32', 'v_rcp_f32', 'v_rsq_f32', 'v_sqrt_f32', 'v_sin_f32', 'v_cos_f32')
class Ins:
    def __init__(self, txt):
        self.txt = txt
        t = txt.split(';')[0].strip()
        self.label = t.endswith(':')
        p = t.split(None, 1)
        self.mn = p[0] if p else ''
        rest = p[1] if len(p) > 1 else ''
        ops = []
        depth = 0; cur = ''
        for ch in rest:
            if ch == '[': depth += 1
            if ch == ']': depth -= 1
            if ch == ',' and depth == 0: ops.append(cur.strip()); cur = ''
            else: cur += ch
        if cur.strip(): ops.append(cur.strip())
        self.mods = ''
        if ops:
            q = ops[-1].split(None, 1)
            ops[-1] = q[0]; self.mods = q[1] if len(q) > 1 else ''
        self.ops = ops
        mn = self.mn
        base = re.sub(r'_(e32|e64|dpp|sdwa)$', '', mn)
        self.base = base
        self.mfma = mn.startswith('v_mfma')
        self.valu = mn.startswith('v_') and not self.mfma
        self.trans = base in TRANS
        self.dot = base.startswith('v_dot')
        self.dpp = mn.endswith('_dpp') or 'quad_perm' in self.mods or 'row_' in self.mods
        self.perm = base.startswith('v_permlane')
        self.vmem = mn.startswith(('buffer_', 'global_', 'flat_'))
        self.ds = mn.startswith('ds_')
        self.salu = mn.startswith('s_')
        self.dma = self.vmem and (' lds' in ' ' + self.mods or 'load_lds' in mn)
        R = set(); W = set(); self.srcC = set(); self.srcAB = set(); self.stdata = set()
        o = [regs_of(x) for x in ops]
        if self.mfma:
            W = o[0]; self.srcAB = o[1] | o[2]; self.srcC = o[3]; R = self.srcAB | self.srcC
        elif self.valu:
            if self.perm: W = o[0] | o[1]; R = set(W)
            else:
                W = set(o[0]);
                n = 1
                if base in ('v_add_co_u32', 'v_addc_co_u32', 'v_sub_co_u32'): W |= o[1]; n = 2
                for x in o[n:]: R |= x
                if base in ('v_fmac_f32', 'v_dot2c_f32_bf16') or self.dpp: R |= o[0]
                if base == 'v_cndmask_b32' and len(ops) == 3: R.add(('s', 'vcc'))
        elif self.ds:
            if base.startswith('ds_read') or base.startswith('ds_bperm'): W = o[0]; [R.update(x) for x in o[1:]]
            else: [R.update(x) for x in o]
        elif self.vmem:
            if 'load' in mn and not self.dma: W = o[0]; [R.update(x) for x in o[1:]]
            else:
                [R.update(x) for x in o]
                if 'x3' in mn or 'x4' in mn:
                    if 'store' in mn: self.stdata = o[0] if mn.startswith('buffer') else o[1]
            if self.dma: R.add(('s', 'm0'))
        elif self.salu and ops and not mn.startswith(('s_cmp', 's_cbranch', 's_branch', 's_waitcnt', 's_nop', 's_barrier', 's_sleep', 's_setprio', 's_endpgm')):
            W = o[0]; [R.update(x) for x in o[1:]]
        self.R = R; self.W = W
        self.states = 0 if (self.label or not self.mn or self.mn.startswith('.')) else (int(ops[0], 0) + 1 if mn == 's_nop' else 1)
        self.passes = 0
        if self.mfma: self.passes = 8 if '32x32x16' in mn else 4

def need(p, c):
    n = 0
    vW = {r for r in p.W if r[0] in 'va'}
    sW = {r for r in p.W if r[0] == 's'}
    if p.valu:
        if c.mfma and vW & c.R: n = max(n, 3 if p.dot else 2)
        if c.valu and c.dpp and vW & c.R: n = max(n, 2)
        if c.perm and vW & c.R: n = max(n, 2)
        if p.trans and c.valu and not c.trans and vW & c.R: n = max(n, 1)
        if p.trans and (c.ds or c.vmem) and vW & c.R: n = max(n, 1)
        if c.base in ('v_readfirstlane_b32', 'v_readlane_b32') and vW & c.R: n = max(n, 1)
        if p.dot and vW & (c.R | c.W):
            same_c = c.dot and c.base == p.base and len(c.ops) >= 4 and not (vW & (regs_of(c.ops[1]) | regs_of(c.ops[2])))
            if not same_c: n = max(n, 3)
        if sW & c.R:
            if c.vmem: n = max(n, 5)
            elif c.valu: n = max(n, 2)
            elif c.salu: n = max(n, 1)
        if ('s', 'vcc') in sW and c.mn.startswith('s_cbranch_vcc'): n = max(n, 1)
    if p.mfma:
        big = 12 if p.passes == 8 else 8
        if c.mfma:
            if vW & c.srcAB: n = max(n, big)
            if vW & c.srcC and not (vW == c.srcC and p.passes == c.passes): n = max(n, big - 2)
            if vW & c.W and not (vW == c.srcC): n = max(n, big)
        elif (c.valu or c.ds or c.vmem) and vW & (c.R | c.W): n = max(n, big)
        if c.valu and p.srcC & c.W: n = max(n, 7 if p.passes == 8 else 3)
    if p.stdata and p.stdata & c.W: n = max(n, 2)
    if p.salu and ('s', 'm0') in p.W and c.dma: n = max(n, 1)
    if p.salu and ('s', 'exec') in p.W and (c.dpp or c.perm): n = max(n, 1)
    return n

def hazard_pass(lines):
    ins = [Ins(l) if not l.startswith(';') else l for l in lines]
    for skip in (False, True):
        out = []; hist = []; inopt = 0
        for x in ins:
            if isinstance(x, str):
                if x.startswith(';OPT{'): inopt += 1
                elif x.startswith(';}OPT'): inopt -= 1
                elif x.startswith(';CUT'): hist = []
                out.append(x); continue
            if skip and inopt:
                out.append(x); continue
            if x.states:
                d = 0; req = 0
                for p in reversed(hist):
                    k = need(p, x) - d
                    if k > req: req = k
                    d += p.states
                    if d > 20: break
                if req > 0:
                    nop = Ins(f's_nop {req-1}'); out.append(nop); hist.append(nop)
                hist.append(x)
                if len(hist) > 40: hist = hist[-30:]
            out.append(x)
        ins = out
    return [x if isinstance(x, str) else x.txt for x in ins]
```

```python
import sys, struct
from asmlib import *

KN = 'recurrent_scan__linear_kernel_hedgehog__glu_gated_geglu__prompt_kernel'
def f2u(x): return struct.unpack('<I', struct.pack('<f', x))[0]
def hx(x): return f'0x{x:x}'
LOG2E = 1.4426950408889634
C1 = 2*0.7978845608028654*LOG2E
C2 = C1*0.044715

class Cfg:
    stamps = False
    nb_early = 0
    spin = 1 << 16
cfg = Cfg()

WS_H, WS_O, WS_PP, WS_KV, WS_FL, WS_ST = 0, 0x800000, 0xA00000, 0x1200000, 0x1300000, 0x1400000
WS_SIZE = 0x1500000
FL_Z, FL_KVD, FL_HE, FL_HL, FL_OF, FL_PP = 0, 256, 512, 768, 1024, 1088
G = 8192
MISC = 19*G; STATF = MISC; STATB = MISC + 512; PHI = MISC + 1024
G_S0 = [14, 15, 16, 17, 18]
G_S1 = list(range(0, 9))
G_S2 = [9, 10, 11, 12, 13, 14, 15]
PHIX = 16*G; VX = 18*G
G_S3 = list(range(0, 7))
G_S4 = [7, 8, 9, 10, 11, 12, 13]
G_E = [14, 15, 0, 1, 2, 3, 4]
G_L = [5, 6, 16, 17, 18, 7, 19]
WO0 = 8
PHI1 = 14*G
KVA = 0
S_W, S_CG, S_RB, S_I, S_JJ, S_HALF, S_HEAD, S_NON, S_W1K, S_DELTA = 3, 4, 5, 6, 7, 42, 43, 44, 46, 47
R_X, R_QKV, R_PHI, R_WO, R_WA, R_WD, R_OUT, R_WS, S_DBG = 8, 12, 16, 20, 24, 28, 32, 36, 40
S_SRC, S_STR, S_COL1, S_KVS, S_HST, S_WGI, S_ONE, S_LO, S_HI, S_CNT = 70, 71, 72, 73, 74, 75, 76, 77, 78, 79
S_T = 80
S_HM = 84
S_POLL = 86
S_ORD = 48
S_ORB = 55
S_PHK = 62
S_Q0 = 63
S_STMP = 64
V_L, V_T1, V_WA, V_KV, V_PB = 0, 1, 2, 3, 4
V_QR = [[5, 7, 9], [6, 8, 10]]
V_KR = [11, 12, 13]
V_L16, V_GA, V_GB, V_GR, V_C, V_RS, V_MK = 14, 15, 16, 17, 18, 19, 20
V_T = 21
STG = 24; TMP = 60; WR = 88; ACC = 112; XF = 144

def la(bases, addr):
    return bases[addr >> 16], addr & 0xffff

uid = [0]
def lab(p):
    uid[0] += 1; return f'L_{p}{uid[0]}'

V_ST = 13
def stamp(s, n, real=False):
    if not cfg.stamps: return
    s.e(f's_mem{"real" if real else ""}time s[{S_STMP}:{S_STMP+1}]')
    s.wait(lg='all')
    s.e(f'v_writelane_b32 v{V_ST}, s{S_STMP}, {n}')
def stamp_flush(s):
    if not cfg.stamps: return
    stamp(s, 31, True)
    s.e(f'v_lshlrev_b32 v{V_T+2}, 2, v{V_L}')
    s.e('s_mov_b64 exec, 0xffffffff')
    s.e(f'buffer_store_dword v{V_ST}, v{V_T+2}, s[{R_WS}:{R_WS+3}], s{S_STMP+2} offen')
    s.e('s_mov_b64 exec, -1')

def opt_begin(s, cmp_txt, branch='s_cbranch_scc0'):
    l = lab('skip'); s.e(cmp_txt); s.e(f'{branch} {l}'); s.e(';OPT{'); return l
def opt_end(s, l):
    s.e(';}OPT'); s.e(f'{l}:')

def flag_store(s, soff, imm=0):
    s.e(f'''v_mov_b32 v{V_T+1}, s{S_NON}
v_mov_b32 v{V_T+2}, s{S_NON+1}
s_mov_b64 exec, 1
buffer_store_dwordx2 v[{V_T+1}:{V_T+2}], off, s[{R_WS}:{R_WS+3}], s{soff} offset:{imm} sc1
s_mov_b64 exec, -1''')

def spoll(s, soff, n, first_plain=False):
    assert not s.lg
    l = lab('poll'); d = lab('pdone')
    s.e(f's_mov_b32 s{S_CNT}, {cfg.spin}')
    def ld(m):
        for k in range(n):
            s.e(f's_buffer_load_dwordx2 s[{S_POLL+2*k}:{S_POLL+2*k+1}], s[{R_WS}:{R_WS+3}], s{soff} offset:{128*k} {m}')
    if first_plain:
        c = lab('pchk')
        ld('')
        s.e(f's_branch {c}')
    s.e(f'{l}:')
    ld('glc')
    if first_plain: s.e(f'{c}:')
    s.e(f's_sub_u32 s{S_CNT}, s{S_CNT}, 1')
    s.e('s_waitcnt lgkmcnt(0)')
    s.e(f's_cbranch_scc1 {d}')
    for k in range(n):
        s.e(f's_cmp_eq_u64 s[{S_POLL+2*k}:{S_POLL+2*k+1}], s[{S_NON}:{S_NON+1}]')
        s.e(f's_cbranch_scc0 {l}')
    s.e(f'{d}:')

def vpoll16(s, soff, wide, t):
    l = lab('vpoll'); d = lab('vdone')
    s.e(f'''v_and_b32 v{t+4}, 15, v{V_L}
v_lshlrev_b32 v{t+4}, 7, v{t+4}
s_mov_b32 s{S_CNT}, {cfg.spin}
{l}:''')
    if wide: s.e(f'buffer_load_dwordx4 v[{t}:{t+3}], v{t+4}, s[{R_WS}:{R_WS+3}], s{soff} offen sc1')
    else: s.e(f'buffer_load_dwordx2 v[{t}:{t+1}], v{t+4}, s[{R_WS}:{R_WS+3}], s{soff} offen sc1')
    s.e(f's_sub_u32 s{S_CNT}, s{S_CNT}, 1')
    s.e('s_waitcnt vmcnt(0)')
    s.e(f's_cbranch_scc1 {d}')
    s.e(f'v_cmp_ne_u64 vcc, s[{S_NON}:{S_NON+1}], v[{t}:{t+1}]')
    s.e(f's_cbranch_vccnz {l}')
    if wide:
        s.e(f'v_cmp_ne_u64 vcc, s[{S_NON}:{S_NON+1}], v[{t+2}:{t+3}]')
        s.e(f's_cbranch_vccnz {l}')
    s.e(f'{d}:')

def dma(s, grp_addr, voff, srd, soff, step, tag):
    s.e(f's_add_u32 m0, s{S_W1K}, {grp_addr}')
    if step is not None: s.e(f's_add_u32 s{soff}, s{soff}, {step}')
    s.vmem(f'buffer_load_dwordx4 v{voff}, s[{srd}:{srd+3}], s{soff} offen lds', tag)

def dma_quad(g, tag):  return lambda s: dma(s, g*G, V_WA, R_WA, S_SRC, f's{S_STR}', tag)
def dma_kv(g, tag):    return lambda s: dma(s, g*G, V_KV, R_QKV, S_KVS, 64*2688, tag)
def dma_by(g, n, q, tag):
    def f(s):
        s.e(f's_add_u32 m0, s{S_W1K}, {g*G}')
        s.e(f's_add_u32 s{S_T}, s{S_ORB+n}, {q*64*896}')
        s.vmem(f'buffer_load_dwordx4 v{V_PB}, s[{R_WD}:{R_WD+3}], s{S_T} offen lds', tag)
    return f
def set_src1(s):
    s.e(f's_sub_u32 s{S_SRC}, s{S_COL1}, s{S_STR}')

def mloop(s, steps, depth, extras=None, hook=None, hook_at=None, pre=None):
    extras = extras or {}
    N = len(steps); nu = len(steps[0]); u0 = lab('m')
    def rd(n):
        if pre and n in pre:
            for f in pre[n]: f(s)
        for u, un in enumerate(steps[n]):
            w = WR + (n % depth)*4*nu + 4*u
            for k, (b, imm) in enumerate(un[0]):
                s.lds(f'ds_read_b64_tr_b16 v[{w+2*k}:{w+2*k+1}], v{b} offset:{imm}', (u0, n, u))
    for n in range(min(depth-1, N)): rd(n)
    for n in range(N):
        if n + depth - 1 < N: rd(n + depth - 1)
        for u, un in enumerate(steps[n]):
            w = WR + (n % depth)*4*nu + 4*u
            s.wait(vm=un[2], lg=[(u0, n, u)] + ([un[3]] if un[3] else []))
            s.e(un[1](w))
        for f in extras.get(n, []): f(s)
        if hook and n == hook_at: hook(s)

def mf(d, a, b, first):
    c = '0' if first else f'v[{d}:{d+15}]'
    return f'v_mfma_f32_32x32x16_bf16 v[{d}:{d+15}], v[{a}:{a+3}], v[{b}:{b+3}], {c}'

def quad_steps(groups, ks0, nks, xftag=False):
    st = []
    for n in range(nks):
        ks = ks0 + n; addr = groups[n >> 1]*G + (n & 1)*4096
        un = []
        for t in range(2):
            reads = [la(V_QR[t], addr + tt*512) for tt in range(2)]
            un.append((reads, (lambda w, t=t, ks=ks: mf(ACC+16*t, w, XF+4*ks, ks == 0)), None, ('xf', ks) if xftag else None))
        st.append(un)
    return st
def kv_steps(isV):
    st = []
    for ks in range(28):
        addr = G_S2[ks >> 2]*G + (ks & 3)*1024
        reads = [la(V_KR, addr + tt*256) for tt in range(2)]
        if isV: mk = lambda w, ks=ks: mf(ACC, XF+4*ks, w, ks == 0)
        else:   mk = lambda w, ks=ks: mf(ACC, w, XF+4*ks, ks == 0)
        st.append([(reads, mk, None, None)])
    return st
def spread(fs, n0, step):
    d = {}
    for k, f in enumerate(fs): d.setdefault(n0 + k*step, []).append(f)
    return d
def sprinkle(s, ops, extras):
    extras = list(extras)
    k = max(1, len(ops)//(len(extras)+1)) if extras else 0
    for n, o in enumerate(ops):
        if callable(o): o(s)
        else: s.e(o)
        if extras and n % k == k-1: extras.pop(0)(s)
    for f in extras: f(s)

def gelu_ops(q):
    ops = []
    for t in range(2):
        a = ACC + 16*t; T = WR + 8*t; H = TMP + 4*t
        for r in range(8): ops.append(f'v_mul_f32 v{T+r}, v{a+r}, v{a+r}')
        for r in range(8): ops.append(f'v_fma_f32 v{T+r}, v{T+r}, v{V_GB}, v{V_GA}')
        for r in range(8): ops.append(f'v_mul_f32 v{T+r}, v{T+r}, v{a+r}')
        for r in range(8):
            ops.append(f'v_exp_f32 v{T+r}, v{T+r}')
            ops.append(f'v_mul_f32 v{a+r}, v{a+r}, v{a+8+r}')
        for r in range(8): ops.append(f'v_fma_f32 v{T+r}, v{T+r}, v{V_GR}, v{V_GR}')
        for r in range(8): ops.append(f'v_rcp_f32 v{T+r}, v{T+r}')
        for r in range(8): ops.append(f'v_mul_f32 v{T+r}, v{T+r}, v{a+r}')
        for m in range(4): ops.append(f'v_cvt_pk_bf16_f32 v{H+m}, v{T+2*m}, v{T+2*m+1}')
        if t == 0 and q == 1: ops.append(f's_add_u32 s{S_HST}, s{S_HST}, 4096')
        ops.append(lambda s, H=H, t=t: s.vmem(f'buffer_store_dwordx4 v[{H}:{H+3}], v{V_L16}, s[{R_WS}:{R_WS+3}], s{S_HST} offen offset:{1024*t} sc1', 'hst'))
    return ops

def phi_addr(s, dst):
    s.e(f'''v_lshrrev_b32 v{dst}, 5, v{V_L}
v_lshlrev_b32 v{dst}, 2, v{dst}
v_bfe_u32 v{dst+1}, v{V_L}, 2, 2
v_add_u32 v{dst}, v{dst}, v{dst+1}
v_mul_u32_u24 v{dst}, 56, v{dst}
v_bfe_u32 v{dst+1}, v{V_L}, 4, 1
v_lshlrev_b32 v{dst+1}, 2, v{dst+1}
v_and_b32 v{dst+2}, 3, v{V_L}
v_add_u32 v{dst+1}, v{dst+1}, v{dst+2}
v_cmp_eq_u32 vcc, 7, v{dst+1}
v_cndmask_b32 v{dst+1}, v{dst+1}, 0, vcc
v_lshl_add_u32 v{dst}, v{dst+1}, 3, v{dst}''')

def phi_matmul(s, acc, p, sbase):
    A = WR; B = WR + 8
    phi_addr(s, V_T)
    s.e(f'v_add_u32 v{V_T}, s{sbase}, v{V_T}')
    for u in range(2):
        for tt in range(2):
            s.lds(f'ds_read_b64_tr_b16 v[{A+4*u+2*tt}:{A+4*u+2*tt+1}], v{V_T} offset:{(16*u+8*tt)*56}', 'phi')
    for m in range(8): s.e(f'v_cvt_pk_bf16_f32 v{B+m}, v{acc+2*m}, v{acc+2*m+1}')
    s.wait(lg='phi')
    s.e(f'v_cndmask_b32 v{A+6}, v{A+6}, 0, s[{S_HM}:{S_HM+1}]')
    s.e(f'v_cndmask_b32 v{A+7}, v{A+7}, 0, s[{S_HM}:{S_HM+1}]')
    s.e(mf(p, A, B, True))
    s.e(mf(p, A+4, B+4, False))

def minmax_exp(p, ep):
    T = WR + 16
    ops = []
    ops.append(f'v_max3_f32 v{T}, v{p}, v{p+1}, v{p+2}')
    ops.append(f'v_min3_f32 v{T+1}, v{p}, v{p+1}, v{p+2}')
    for k in range(3, 15, 2):
        ops.append(f'v_max3_f32 v{T}, v{T}, v{p+k}, v{p+k+1}')
        ops.append(f'v_min3_f32 v{T+1}, v{T+1}, v{p+k}, v{p+k+1}')
    ops.append(f'v_max_f32 v{T}, v{T}, v{p+15}')
    ops.append(f'v_min_f32 v{T+1}, v{T+1}, v{p+15}')
    ops += [f'v_mov_b32 v{T+2}, v{T}', f'v_mov_b32 v{T+3}, v{T+1}',
            f'v_permlane32_swap_b32 v{T}, v{T+2}', f'v_permlane32_swap_b32 v{T+1}, v{T+3}',
            f'v_max_f32 v{T}, v{T}, v{T+2}', f'v_min_f32 v{T+1}, v{T+1}, v{T+3}',
            f'v_mul_f32 v{T}, v{T}, v{V_C}', f'v_mul_f32 v{T+1}, v{T+1}, v{V_C}']
    for r in range(16):
        ops.append(f'v_fma_f32 v{ep+r}, v{p+r}, v{V_C}, -v{T}')
        ops.append(f'v_fma_f32 v{p+r}, -v{p+r}, v{V_C}, v{T+1}')
    for r in range(16):
        ops.append(f'v_exp_f32 v{ep+r}, v{ep+r}')
        ops.append(f'v_exp_f32 v{p+r}, v{p+r}')
    return ops

def k_epi(s):
    P = ACC + 16; EP = ACC; T = WR + 16
    phi_matmul(s, ACC, P, S_PHK)
    a = TMP
    s.e(f'''v_and_b32 v{a}, 31, v{V_L}
v_bfe_u32 v{a+1}, v{V_L}, 1, 1
v_lshlrev_b32 v{a+1}, 2, v{a+1}
v_bfe_u32 v{a+2}, v{V_L}, 2, 2
v_or_b32 v{a+1}, v{a+1}, v{a+2}
v_lshlrev_b32 v{a+1}, 4, v{a+1}
v_lshl_add_u32 v{a}, v{a}, 7, v{a+1}
v_lshrrev_b32 v{a+1}, 5, v{V_L}
v_lshl_add_u32 v{a}, v{a+1}, 3, v{a}
s_lshl_b32 s{S_T}, s{S_RB}, 12
s_add_u32 s{S_T}, s{S_T}, {PHIX}
v_add_u32 v{a}, s{S_T}, v{a}''')
    for c in range(1, 8): s.e(f'v_xor_b32 v{a+c}, {16*c}, v{a}')
    for o in minmax_exp(P, EP): s.e(o)
    for sg, e in ((0, EP), (1, P)):
        x, y = T + 2*sg, T + 2*sg + 1
        s.e(f'v_add_f32 v{x}, v{e}, v{e+1}')
        s.e(f'v_add_f32 v{y}, v{e+12}, v{e+13}')
    for k in range(2, 12):
        for sg, e in ((0, EP), (1, P)): s.e(f'v_add_f32 v{T+2*sg}, v{T+2*sg}, v{e+k}')
    for k in (14, 15):
        for sg, e in ((0, EP), (1, P)): s.e(f'v_add_f32 v{T+2*sg+1}, v{T+2*sg+1}, v{e+k}')
    s.e(f'''v_fmac_f32 v{T}, v{T+1}, v{V_MK}
v_fmac_f32 v{T+2}, v{T+3}, v{V_MK}
v_mov_b32 v{T+1}, v{T}
v_mov_b32 v{T+3}, v{T+2}
v_permlane32_swap_b32 v{T}, v{T+1}
v_permlane32_swap_b32 v{T+2}, v{T+3}
v_add_f32 v{T}, v{T}, v{T+1}
v_add_f32 v{T+2}, v{T+2}, v{T+3}
v_rcp_f32 v{T}, v{T}
v_rcp_f32 v{T+2}, v{T+2}
v_mul_f32 v{T}, v{T}, v{V_RS}
v_mul_f32 v{T+2}, v{T+2}, v{V_RS}''')
    for sg, e in ((0, EP), (1, P)):
        for r in range(16): s.e(f'v_mul_f32 v{e+r}, v{e+r}, v{T+2*sg}')
        for m in range(8): s.e(f'v_cvt_pk_bf16_f32 v{WR+8*sg+m}, v{e+2*m}, v{e+2*m+1}')
        for qd in range(4):
            s.lds(f'ds_write_b64 v{a+4*sg+qd}, v[{WR+8*sg+2*qd}:{WR+8*sg+2*qd+1}]', 'w')

def v_epi(s):
    B = WR
    for m in range(8): s.e(f'v_cvt_pk_bf16_f32 v{B+m}, v{ACC+2*m}, v{ACC+2*m+1}')
    s.e(f'''v_lshrrev_b32 v{V_T}, 5, v{V_L}
v_lshlrev_b32 v{V_T}, 3, v{V_T}
s_lshl_b32 s{S_T}, s{S_RB}, 6
s_add_u32 s{S_T}, s{S_T}, {STATB}
v_add_u32 v{V_T}, s{S_T}, v{V_T}
s_lshl_b32 s{S_T}, s{S_RB}, 11
s_add_u32 s{S_T}, s{S_T}, {VX}
v_add_u32 v{V_T+1}, s{S_T}, v{V_L16}
s_mov_b32 exec_lo, 0x10000000
s_mov_b32 exec_hi, 0x10000000''')
    for a in range(4): s.lds(f'ds_read_b64 v[{B+2*a}:{B+2*a+1}], v{V_T} offset:{16*a}', 'sb')
    s.e('s_mov_b64 exec, -1')
    s.wait(lg='all')
    for u in range(2): s.lds(f'ds_write_b128 v{V_T+1}, v[{B+4*u}:{B+4*u+3}] offset:{1024*u}', 'w')

def kv_block(s):
    l = opt_begin(s, f's_cmp_lt_u32 s{S_W}, 6')
    o = s.fork(); o.vm = []; o.lg = []
    a = TMP + 16
    o.e(f'''s_lshl_b32 s{S_T}, s{S_HEAD}, 11
s_add_u32 s{S_T}, s{S_T}, {WS_FL + FL_Z*128}''')
    vpoll16(o, S_T, False, TMP + 20)
    o.e(f'''v_lshrrev_b32 v{a}, 5, v{V_L}
v_bfe_u32 v{a+1}, v{V_L}, 2, 2
v_lshl_add_u32 v{a+2}, v{a}, 2, v{a+1}
v_lshlrev_b32 v{a+2}, 7, v{a+2}
v_lshrrev_b32 v{a+1}, 1, v{a+1}
v_lshl_add_u32 v{a}, v{a+1}, 2, v{a}
v_lshlrev_b32 v{a}, 4, v{a}
v_bfe_u32 v{a+1}, v{V_L}, 4, 1
v_lshlrev_b32 v{a+1}, 5, v{a+1}
v_and_b32 v{a+3}, 3, v{V_L}
v_lshl_add_u32 v{a+1}, v{a+3}, 3, v{a+1}
s_and_b32 s{S_T+1}, s{S_W}, 1
s_lshl_b32 s{S_T}, s{S_T+1}, 6
v_add_u32 v{a+1}, s{S_T}, v{a+1}
v_xor_b32 v{a}, v{a}, v{a+1}
v_add_u32 v{a}, v{a}, v{a+2}
v_add_u32 v{a}, {PHIX}, v{a}
v_xor_b32 v{a+1}, 32, v{a}
v_add_u32 v{a+2}, {VX}, v{V_L16}
v_lshlrev_b32 v{a+3}, 2, v{V_L}''')
    for half in range(2):
        base = ACC
        for k in range(4):
            n = half*4 + k
            for tt in range(2):
                o.lds(f'ds_read_b64_tr_b16 v[{base+8*k+2*tt}:{base+8*k+2*tt+1}], v{a+tt} offset:{(16*n+8*tt)*128}', ('k', n))
            o.lds(f'ds_read_b128 v[{base+8*k+4}:{base+8*k+7}], v{a+2} offset:{1024*n}', ('k', n))
        for k in range(4):
            n = half*4 + k
            o.wait(lg=[('k', n)])
            o.e(mf(TMP, base+8*k, base+8*k+4, n == 0))
    o.e(f'''s_lshl_b32 s{S_T}, s{S_HEAD}, 13
s_lshl_b32 s{S_T+1}, s{S_T+1}, 12
s_add_u32 s{S_T}, s{S_T}, s{S_T+1}
s_add_u32 s{S_T}, s{S_T}, {WS_KV}''')
    for r in range(16):
        o.e(f'buffer_atomic_add_f32 v{TMP+r}, v{a+3}, s[{R_WS}:{R_WS+3}], s{S_T} offen offset:{256*r}')
    opt_end(s, l)

def kv_flag(s):
    l = opt_begin(s, f's_cmp_lt_u32 s{S_W}, 6')
    s.e(f'''s_waitcnt vmcnt(0)
s_lshl_b32 s{S_T}, s{S_HEAD}, 4
s_add_u32 s{S_T}, s{S_T}, s{S_I}
s_lshl_b32 s{S_T}, s{S_T}, 4
s_and_b32 s{S_T+1}, s{S_W}, 1
s_add_u32 s{S_T}, s{S_T}, s{S_T+1}
s_lshl_b32 s{S_T}, s{S_T}, 3
s_add_u32 s{S_T}, s{S_T}, {WS_FL + FL_KVD*128}''')
    flag_store(s, S_T)
    opt_end(s, l)

def z_flag(s):
    l = opt_begin(s, f's_cmp_eq_u32 s{S_W}, 4')
    s.e(f'''s_lshl_b32 s{S_T}, s{S_HEAD}, 4
s_add_u32 s{S_T}, s{S_T}, s{S_I}
s_lshl_b32 s{S_T}, s{S_T}, 7
s_add_u32 s{S_T}, s{S_T}, {WS_FL + FL_Z*128}''')
    flag_store(s, S_T)
    opt_end(s, l)

def wg_flag(s, wave, base):
    l = opt_begin(s, f's_cmp_eq_u32 s{S_W}, {wave}')
    s.e(f'''s_lshl_b32 s{S_T}, s{S_WGI}, 7
s_add_u32 s{S_T}, s{S_T}, {WS_FL + base*128}''')
    flag_store(s, S_T)
    opt_end(s, l)

def q_epi(s, E, phibase_sgpr_setup):
    for t in range(2):
        phibase_sgpr_setup(s, t)
        P = TMP; EP = ACC + 16*t
        phi_matmul(s, ACC + 16*t, P, S_T + 2)
        for o in minmax_exp(P, EP): s.e(o)
        for m in range(8): s.e(f'v_cvt_pk_bf16_f32 v{E+16*t+m}, v{EP+2*m}, v{EP+2*m+1}')
        for m in range(8): s.e(f'v_cvt_pk_bf16_f32 v{E+16*t+8+m}, v{P+2*m}, v{P+2*m+1}')

def consts(s, std):
    s.e(f'''v_rcp_f32 v{V_RS}, v{std}
v_mul_f32 v{V_GR}, v{std}, v{std}
v_mul_f32 v{V_GA}, {hx(f2u(-C1))}, v{V_RS}
v_mul_f32 v{V_GB}, v{V_RS}, v{V_RS}
v_mul_f32 v{V_C}, {hx(f2u(LOG2E))}, v{V_RS}
v_mul_f32 v{V_GB}, v{V_GB}, v{V_RS}
v_mul_f32 v{V_GB}, {hx(f2u(-C2))}, v{V_GB}''')

XA = TMP
def xf_read(ks):
    def f(s):
        m = ks >> 2
        b = XA + (ks & 3) + (4 if m >= 4 else 0)
        s.lds(f'ds_read_b128 v[{XF+4*ks}:{XF+4*ks+3}], v{b} offset:{(m & 3)*16384}', ('xf', ks))
    return f
def stg_write(n):
    def f(s):
        s.wait(vm=[('stg', n)])
        b, imm = la([XA+10, XA+11], G_S1[n]*G)
        s.lds(f'ds_write_b128 v{b}, v[{STG+4*n}:{STG+4*n+3}] offset:{imm}', 'w')
    return f
def barrier(s, **kw):
    s.wait(**kw); s.e('s_barrier')

def prologue(s):
    s.e(f'''s_cmp_ge_u32 s2, 256
s_cbranch_scc1 L_end
s_load_dwordx16 s[48:63], s[0:1], 0
s_load_dwordx4 s[64:67], s[0:1], 64
s_load_dwordx2 s[68:69], s[0:1], 80
s_memrealtime s[{S_NON}:{S_NON+1}]
{f's_memtime s[{S_POLL}:{S_POLL+1}]' if cfg.stamps else ''}
s_setprio 3
v_lshrrev_b32 v{V_T}, 6, v0
v_and_b32 v0, 63, v0
v_readfirstlane_b32 s{S_W}, v{V_T}
s_and_b32 s{S_HALF}, s2, 1
s_bfe_u32 s{S_I}, s2, 0x20001
s_lshl_b32 s{S_I}, s{S_I}, 2
s_bfe_u32 s{S_T}, s2, 0x20003
s_add_u32 s{S_I}, s{S_I}, s{S_T}
s_lshr_b32 s{S_JJ}, s2, 5
v_lshrrev_b32 v{V_T}, 3, v0
v_mul_u32_u24 v{V_T1}, 896, v{V_T}
v_and_b32 v{V_T+1}, 7, v0
v_lshl_add_u32 v{V_T1}, v{V_T+1}, 4, v{V_T1}
s_add_u32 s{S_T+1}, s{S_W}, s{S_JJ}
s_and_b32 s{S_T+1}, s{S_T+1}, 7
s_lshl_b32 s{S_T+1}, s{S_T+1}, 4
s_lshl_b32 s{S_T}, s{S_I}, 7
s_add_u32 s{S_T}, s{S_T}, s{S_T+1}
s_mul_i32 s{S_T}, s{S_T}, 896
s_add_u32 s{S_T+2}, s{S_T}, 7168
s_mov_b32 s{R_X+2}, {2048*896}
s_mov_b32 s{R_X+3}, 0x20000
s_waitcnt lgkmcnt(0)
s_mov_b32 s{R_X}, s48
s_mov_b32 s{R_X+1}, s49''')
    for q in range(2):
        for m in range(7):
            d = XF + 28*q + 4*m
            s.vmem(f'buffer_load_dwordx4 v[{d}:{d+3}], v{V_T1}, s[{R_X}:{R_X+3}], s{S_T+2*q} offen offset:{128*m}', ('x', q, m))
    s.e('s_setprio 0')
    def srd(r, p, n):
        s.e(f's_mov_b32 s{r}, s{p}\ns_mov_b32 s{r+1}, s{p+1}\ns_mov_b32 s{r+2}, {n}\ns_mov_b32 s{r+3}, 0x20000')
    srd(R_QKV, 50, 448*2688); srd(R_PHI, 52, 16*1568); srd(R_WO, 54, 448*896); srd(R_WD, 62, 1792*896)
    srd(R_OUT, 64, 2048*896); srd(R_WS, 68, WS_SIZE)
    s.e(f'''s_mov_b32 s{S_DBG}, s66
s_mov_b32 s{S_DBG+1}, s67
s_lshr_b32 s{S_CG}, s{S_W}, 2
s_lshl_b32 s{S_RB}, s{S_CG}, 1
s_add_u32 s{S_RB}, s{S_RB}, s{S_W}
s_and_b32 s{S_RB}, s{S_RB}, 3
s_lshl_b32 s{S_W1K}, s{S_W}, 10
s_lshl_b32 s{S_HEAD}, s{S_HALF}, 3
s_add_u32 s{S_HEAD}, s{S_HEAD}, s{S_JJ}
s_and_b32 s{S_DELTA}, s{S_HEAD}, 1
s_lshl_b32 s{S_DELTA}, s{S_DELTA}, 3
s_lshl_b32 s{S_WGI}, s{S_I}, 1
s_add_u32 s{S_WGI}, s{S_WGI}, s{S_HALF}
s_lshl_b32 s{S_WGI}, s{S_WGI}, 3
s_add_u32 s{S_WGI}, s{S_WGI}, s{S_JJ}
s_mov_b32 s{S_ONE}, 0x3f803f80
s_mov_b32 s{S_LO}, 0x3f80
s_mov_b32 s{S_HI}, 0x3f800000
s_mov_b32 s{S_HM}, 0
s_mov_b32 s{S_HM+1}, -1
v_lshlrev_b32 v{V_L16}, 4, v0
v_mov_b32 v{V_MK}, 1.0
v_cndmask_b32 v{V_MK}, v{V_MK}, 0, s[{S_HM}:{S_HM+1}]''')
    s.e(f's_or_b32 s{S_T}, s2, s{S_W}')
    l = opt_begin(s, f's_cmp_eq_u32 s{S_T}, 0')
    s.e(f'''s_or_b32 s{S_NON+1}, s{S_NON+1}, 0x80000000
v_mov_b32 v{TMP}, s{S_NON}
v_mov_b32 v{TMP+1}, s{S_NON+1}
v_mov_b32 v{TMP+2}, 0
s_mov_b64 exec, 1
global_store_dwordx2 v{TMP+2}, v[{TMP}:{TMP+1}], s[{S_DBG}:{S_DBG+1}] sc1
s_mov_b64 exec, -1''')
    opt_end(s, l)
    l = opt_begin(s, f's_cmp_eq_u32 s{S_W}, 4')
    s.e(f'''s_lshl_b32 s{S_T}, s{S_HEAD}, 4
s_add_u32 s{S_T}, s{S_T}, s{S_I}
s_lshl_b32 s{S_T}, s{S_T}, 9
s_add_u32 s{S_T}, s{S_T}, {WS_KV}
v_mov_b32 v{TMP}, 0
v_mov_b32 v{TMP+1}, 0
v_lshlrev_b32 v{TMP+2}, 3, v0
buffer_store_dwordx2 v[{TMP}:{TMP+1}], v{TMP+2}, s[{R_WS}:{R_WS+3}], s{S_T} offen sc1''')
    opt_end(s, l)
    t0, t1, t2 = V_T, V_T+1, V_T+2
    s.e(f'''s_bitcmp1_b32 s{S_W}, 1
s_cselect_b32 s{R_WA}, s60, s58
s_cselect_b32 s{R_WA+1}, s61, s59
s_cselect_b32 s{S_T+1}, 1, 0
s_cmp_eq_u32 s{S_JJ}, 7
s_cselect_b32 s{R_WA}, s50, s{R_WA}
s_cselect_b32 s{R_WA+1}, s51, s{R_WA+1}
s_movk_i32 s{S_T}, 3584
s_cselect_b32 s{S_T}, 2688, s{S_T}
s_mov_b32 s{R_WA+3}, 0x20000
s_mul_i32 s{R_WA+2}, s{S_T}, 448
s_cselect_b32 s{S_T+2}, 8, 2
s_lshl_b32 s{S_STR}, s{S_T}, 5
s_mul_i32 s{S_T+2}, s{S_T+2}, s{S_T+1}
v_lshrrev_b32 v{t0}, 3, v0
v_bfe_u32 v{t1}, v0, 4, 1
v_lshlrev_b32 v{t1}, 2, v{t1}
v_and_b32 v{t2}, 7, v0
v_xor_b32 v{t1}, v{t1}, v{t2}
v_mul_u32_u24 v{V_PB}, 896, v{t0}
v_lshl_add_u32 v{V_PB}, v{t1}, 4, v{V_PB}
v_xor_b32 v{t1}, s{S_T+2}, v{t1}
v_min_u32 v{t1}, 13, v{t1}
s_and_b32 s{S_T+1}, s{S_W}, 1
s_lshl_b32 s{S_T+2}, s{S_CG}, 1
s_add_u32 s{S_T+1}, s{S_T+1}, s{S_T+2}
s_lshl_b32 s{S_T+1}, s{S_T+1}, 3
v_add_u32 v{t0}, s{S_T+1}, v{t0}
v_mul_lo_u32 v{V_WA}, v{t0}, s{S_T}
v_lshl_add_u32 v{V_WA}, v{t1}, 4, v{V_WA}
s_mul_i32 s{S_T+1}, s{S_W}, {8*896}
v_add_u32 v{V_PB}, s{S_T+1}, v{V_PB}''')
    s.e(f'''s_mul_i32 s{S_SRC}, s{S_HALF}, 1792
s_lshl_b32 s{S_T}, s{S_JJ}, 8
s_add_u32 s{S_SRC}, s{S_SRC}, s{S_T}
s_add_u32 s{S_COL1}, s{S_SRC}, 128
s_mul_i32 s{S_T}, s{S_HALF}, 448
s_add_u32 s{S_T+1}, s{S_T}, 224
s_cmp_eq_u32 s{S_JJ}, 7
s_cselect_b32 s{S_SRC}, s{S_T+1}, s{S_SRC}
s_cselect_b32 s{S_COL1}, s{S_T}, s{S_COL1}
s_mov_b32 s{S_PHK}, {PHI}
s_cselect_b32 s{S_PHK}, {PHI + 3*1568}, s{S_PHK}
s_cselect_b32 s{S_T}, 3, 0
s_cselect_b32 s{S_T+1}, 7, 2
s_sub_u32 s{S_SRC}, s{S_SRC}, s{S_STR}
s_sub_u32 s{S_T}, s{S_HEAD}, s{S_T}
s_mul_i32 s{S_T}, s{S_T}, 1568
s_add_u32 s{S_T}, s{S_T}, s{S_W1K}''')
    l = opt_begin(s, f's_cmp_lt_u32 s{S_W}, s{S_T+1}')
    s.e(f's_add_u32 m0, s{S_W1K}, {PHI}')
    s.e(f'buffer_load_dwordx4 v{V_L16}, s[{R_PHI}:{R_PHI+3}], s{S_T} offen lds')
    opt_end(s, l)
    s.e(f'''v_lshrrev_b32 v{t0}, 2, v0
s_and_b32 s{S_T}, s{S_W}, 3
s_lshl_b32 s{S_T}, s{S_T}, 4
v_add_u32 v{t0}, s{S_T}, v{t0}
v_mul_u32_u24 v{V_KV}, 2688, v{t0}
v_and_b32 v{t1}, 3, v0
v_lshl_add_u32 v{V_KV}, v{t1}, 4, v{V_KV}
s_add_u32 s{S_KVS}, s{S_CG}, 1
s_mul_i32 s{S_KVS}, s{S_KVS}, 896
s_mul_i32 s{S_T}, s{S_HEAD}, 56
s_add_u32 s{S_KVS}, s{S_KVS}, s{S_T}
s_sub_u32 s{S_KVS}, s{S_KVS}, s{S_DELTA}
s_sub_u32 s{S_KVS}, s{S_KVS}, {64*2688}''')
    a = TMP + 12
    s.e(f'''v_lshrrev_b32 v{a}, 5, v0
v_bfe_u32 v{a+1}, v0, 2, 2
v_lshl_add_u32 v{a}, v{a}, 3, v{a+1}
v_bfe_u32 v{a+2}, v0, 4, 1
v_and_b32 v{a+3}, 3, v0
v_lshl_add_u32 v{a+4}, v{a+2}, 2, v{a+3}
v_cmp_eq_u32 vcc, 7, v{a+4}
v_cndmask_b32 v{a+4}, v{a+4}, 0, vcc
v_lshlrev_b32 v{a+4}, 3, v{a+4}
v_lshl_add_u32 v{V_KR[0]}, v{a}, 6, v{a+4}
s_lshl_b32 s{S_T}, s{S_CG}, 12
s_add_u32 s{S_T}, s{S_T}, s{S_DELTA}
v_add_u32 v{V_KR[0]}, s{S_T}, v{V_KR[0]}
v_add_u32 v{V_KR[1]}, 0x10000, v{V_KR[0]}
v_bfe_u32 v{a+5}, v0, 3, 1
v_lshlrev_b32 v{a+5}, 6, v{a+5}
v_lshlrev_b32 v{a}, 7, v{a}
s_cmp_eq_u32 s{S_JJ}, 7
s_cselect_b64 vcc, -1, 0''')
    for t in range(2):
        s.e(f'''s_lshl_b32 s{S_T}, s{S_CG}, 1
s_add_u32 s{S_T}, s{S_T}, {t}
s_lshl_b32 s{S_T+1}, s{S_T}, 5
s_mul_i32 s{S_T}, s{S_T}, 56
v_lshlrev_b32 v{a+6}, 5, v{a+2}
v_xor_b32 v{a+6}, s{S_T+1}, v{a+6}
v_lshl_add_u32 v{a+6}, v{a+3}, 3, v{a+6}
v_lshl_add_u32 v{a+6}, v{a+2}, 11, v{a+6}
v_add_u32 v{a+7}, s{S_T}, v{a+4}
v_lshrrev_b32 v{a+8}, 7, v{a+7}
v_and_b32 v{a+7}, 127, v{a+7}
v_lshl_add_u32 v{a+7}, v{a+8}, 11, v{a+7}
v_cndmask_b32 v{a+6}, v{a+6}, v{a+7}, vcc
v_xor_b32 v{a+6}, v{a+6}, v{a+5}
v_add_u32 v{V_QR[t][0]}, v{a+6}, v{a}
v_add_u32 v{V_QR[t][1]}, 0x10000, v{V_QR[t][0]}
v_add_u32 v{V_QR[t][2]}, 0x20000, v{V_QR[t][0]}''')
    s.e(f'''s_lshl_b32 s{S_T}, s{S_I}, 2
s_add_u32 s{S_T}, s{S_T}, s{S_RB}
s_mul_i32 s{S_T}, s{S_T}, 112
s_mul_i32 s{S_T+1}, s{S_HALF}, 56
s_add_u32 s{S_T}, s{S_T}, s{S_T+1}
s_lshl_b32 s{S_T+1}, s{S_CG}, 1
s_add_u32 s{S_T}, s{S_T}, s{S_T+1}
s_lshl_b32 s{S_T}, s{S_T}, 10
s_lshl_b32 s{S_T+1}, s{S_JJ}, 13
s_add_u32 s{S_HST}, s{S_T}, s{S_T+1}
s_mul_i32 s{S_T+1}, s{S_HALF}, {896*896}
s_lshl_b32 s{S_T+2}, s{S_JJ}, 7
s_add_u32 s{S_T+1}, s{S_T+1}, s{S_T+2}
s_mov_b32 s{S_T+2}, s{S_JJ}''')
    for n in range(7):
        s.e(f'''s_add_u32 s{S_T+2}, s{S_T+2}, 1
s_cmp_ge_u32 s{S_T+2}, 7
s_cselect_b32 s{S_T+3}, 7, 0
s_sub_u32 s{S_T+2}, s{S_T+2}, s{S_T+3}
s_lshl_b32 s{S_T+3}, s{S_T+2}, 13
s_add_u32 s{S_ORD+n}, s{S_T}, s{S_T+3}
s_mul_i32 s{S_T+3}, s{S_T+2}, {128*896}
s_add_u32 s{S_ORB+n}, s{S_T+1}, s{S_T+3}''')
    if cfg.stamps:
        s.e(f'''s_lshl_b32 s{S_STMP+2}, s2, 3
s_add_u32 s{S_STMP+2}, s{S_STMP+2}, s{S_W}
s_lshl_b32 s{S_STMP+2}, s{S_STMP+2}, 7
s_add_u32 s{S_STMP+2}, s{S_STMP+2}, {WS_ST}
v_mov_b32 v{V_ST}, 0
v_writelane_b32 v{V_ST}, s{S_NON}, 30
v_writelane_b32 v{V_ST}, s{S_POLL}, 0''')
    W0 = WR;
    s.e(f'''s_add_u32 s{S_T+1}, s{S_W}, s{S_JJ}
s_and_b32 s{S_T+1}, s{S_T+1}, 7
s_lshl_b32 s{S_T+1}, s{S_T+1}, 4
v_lshrrev_b32 v{t0}, 3, v0
v_add_u32 v{t0}, s{S_T+1}, v{t0}
v_lshrrev_b32 v{t1}, 4, v0
v_and_b32 v{t2}, 7, v0
v_xor_b32 v{t1}, v{t1}, v{t2}
v_lshlrev_b32 v{t1}, 4, v{t1}
v_lshl_add_u32 v{W0}, v{t0}, 7, v{t1}
v_xor_b32 v{W0+1}, 64, v{W0}
v_add_u32 v{W0+1}, 1024, v{W0+1}
v_add_u32 v{W0+2}, 0x10000, v{W0}
v_add_u32 v{W0+3}, 0x10000, v{W0+1}
v_lshlrev_b32 v{W0+4}, 2, v{t0}
v_add_u32 v{W0+4}, {STATF}, v{W0+4}
v_lshlrev_b32 v{W0+5}, 1, v{t0}
v_add_u32 v{W0+5}, {STATB}, v{W0+5}''')
    s.e(f'''v_and_b32 v{t0}, 31, v0
s_lshl_b32 s{S_T}, s{S_RB}, 5
v_add_u32 v{t0}, s{S_T}, v{t0}
v_bfe_u32 v{t1}, v0, 1, 3
v_lshrrev_b32 v{t2}, 5, v0
v_xor_b32 v{t1}, v{t1}, v{t2}
v_lshlrev_b32 v{t1}, 4, v{t1}
v_lshl_add_u32 v{XA}, v{t0}, 7, v{t1}
v_xor_b32 v{XA+1}, 32, v{XA}
v_xor_b32 v{XA+2}, 64, v{XA}
v_xor_b32 v{XA+3}, 96, v{XA}
v_add_u32 v{XA+4}, 0x10000, v{XA}
v_add_u32 v{XA+5}, 0x10000, v{XA+1}
v_add_u32 v{XA+6}, 0x10000, v{XA+2}
v_add_u32 v{XA+7}, 0x10000, v{XA+3}
v_lshlrev_b32 v{XA+8}, 2, v{t0}
v_add_u32 v{XA+8}, {STATF}, v{XA+8}
v_add_u32 v{XA+10}, s{S_W1K}, v{V_L16}
v_add_u32 v{XA+11}, 0x10000, v{XA+10}''')
    def ln(q):
        X = XF + 28*q; A = ACC; T = ACC + 8
        for m in range(7):
            s.wait(vm=[('x', q, m)])
            for j in range(4):
                x = X + 4*m + j; first = (m == 0 and j < 2)
                s.e(f'v_dot2_f32_bf16 v{A+(j&1)}, v{x}, s{S_ONE}, ' + ('0' if first else f'v{A+(j&1)}'))
                s.e(f'v_dot2_f32_bf16 v{A+2+(j&1)}, v{x}, v{x}, ' + ('0' if first else f'v{A+2+(j&1)}'))
        s.e(f'v_add_f32 v{A}, v{A}, v{A+1}\nv_add_f32 v{A+2}, v{A+2}, v{A+3}')
        for dp in ('quad_perm:[1,0,3,2]', 'quad_perm:[2,3,0,1]', 'row_half_mirror'):
            s.e(f'v_add_f32_dpp v{A}, v{A}, v{A} {dp} row_mask:0xf bank_mask:0xf')
            s.e(f'v_add_f32_dpp v{A+2}, v{A+2}, v{A+2} {dp} row_mask:0xf bank_mask:0xf')
        k = hx(f2u(1.0/448))
        s.e(f'''v_mul_f32 v{A}, {k}, v{A}
v_mul_f32 v{A+2}, {k}, v{A+2}
v_fma_f32 v{A+2}, -v{A}, v{A}, v{A+2}
v_max_f32 v{A+2}, 0, v{A+2}
v_cvt_pk_bf16_f32 v{A+1}, -v{A}, v{A+2}
v_lshlrev_b32 v{A}, 16, v{A+1}
v_and_b32 v{A+2}, 0xffff0000, v{A+1}
v_add_f32 v{A+2}, {hx(f2u(1e-5))}, v{A+2}
v_cvt_pk_bf16_f32 v{A+2}, v{A+2}, v{A+2}
v_lshlrev_b32 v{A+2}, 16, v{A+2}
v_sqrt_f32 v{A+2}, v{A+2}''')
        for m in range(7):
            for j in range(4):
                x = X + 4*m + j
                s.e(f'v_dot2_f32_bf16 v{T+2*j}, v{x}, s{S_LO}, v{A}')
                s.e(f'v_dot2_f32_bf16 v{T+2*j+1}, v{x}, s{S_HI}, v{A}')
            for j in range(4):
                s.e(f'v_cvt_pk_bf16_f32 v{X+4*m+j}, v{T+2*j}, v{T+2*j+1}')
            s.lds(f'ds_write_b128 v{W0+q+(2 if m >= 4 else 0)}, v[{X+4*m}:{X+4*m+3}] offset:{(m&3)*16384}', 'w')
            if m == 0:
                s.e(f'''v_cvt_pk_bf16_f32 v{A+3}, v{A+2}, v{A+2}
v_lshlrev_b32 v{A+2}, 16, v{A+3}
s_mov_b32 exec_lo, 0x01010101
s_mov_b32 exec_hi, 0x01010101''')
                s.lds(f'ds_write_b32 v{W0+4}, v{A+2} offset:{32*q}', 'w')
                s.lds(f'ds_write_b16 v{W0+5}, v{A+3} offset:{16*q}', 'w')
                s.e('s_mov_b64 exec, -1')
    ln(0)
    for g in G_S0: dma_quad(g, 's0')(s)
    ln(1)
    for n in range(9):
        s.e(f's_add_u32 s{S_SRC}, s{S_SRC}, s{S_STR}')
        s.vmem(f'buffer_load_dwordx4 v[{STG+4*n}:{STG+4*n+3}], v{V_WA}, s[{R_WA}:{R_WA+3}], s{S_SRC} offen', ('stg', n))
    stamp(s, 1)
    barrier(s, vm='s0', lg='all')

def nonce_issue(s):
    s.e(f's_load_dwordx2 s[{S_NON}:{S_NON+1}], s[{S_DBG}:{S_DBG+1}], 0')
def nonce_check(s):
    l = opt_begin(s, f's_cmp_eq_u32 s{S_NON+1}, 0')
    lp = lab('non')
    s.e(f'''s_mov_b32 s{S_CNT}, {cfg.spin}
v_mov_b32 v{V_T}, 0
{lp}:
global_load_dwordx2 v[{V_T+1}:{V_T+2}], v{V_T}, s[{S_DBG}:{S_DBG+1}] sc1
s_waitcnt vmcnt(0)
v_readfirstlane_b32 s{S_NON}, v{V_T+1}
v_readfirstlane_b32 s{S_NON+1}, v{V_T+2}
s_sub_u32 s{S_CNT}, s{S_CNT}, 1
s_cbranch_scc1 {l}
s_cmp_eq_u32 s{S_NON+1}, 0
s_cbranch_scc1 {lp}''')
    opt_end(s, l)

def early_ld(n, t):
    d = XF + 8*n + 4*t
    return lambda s: s.vmem(f'buffer_load_dwordx4 v[{d}:{d+3}], v{V_L16}, s[{R_WS}:{R_WS+3}], s{S_ORD+n} offen offset:{1024*t} sc1', ('ae', n, t))
def poll_grp(s, base):
    s.e(f'''s_and_b32 s{S_T}, s{S_WGI}, 0xf8
s_lshl_b32 s{S_T}, s{S_T}, 7
s_add_u32 s{S_T}, s{S_T}, {WS_FL + base*128}''')
    spoll(s, S_T, 7, True)

def q0_base(s, t):
    s.e(f's_lshl_b32 s{S_T+2}, s{S_CG}, 1\ns_add_u32 s{S_T+2}, s{S_T+2}, {t}\ns_mul_i32 s{S_T+2}, s{S_T+2}, 1568\ns_add_u32 s{S_T+2}, s{S_T+2}, {PHI}')
def q1_base(s, t):
    s.e(f's_lshl_b32 s{S_T+2}, s{S_CG}, 1\ns_add_u32 s{S_T+2}, s{S_T+2}, {t}\ns_mul_i32 s{S_T+2}, s{S_T+2}, 1568\ns_add_u32 s{S_T+2}, s{S_T+2}, {PHI1}')
def dma_phi1(s):
    s.e(f'''s_add_u32 m0, s{S_W1K}, {PHI1}
s_mul_i32 s{S_T}, s{S_HALF}, {8*1568}
s_add_u32 s{S_T}, s{S_T}, s{S_W1K}''')
    s.vmem(f'buffer_load_dwordx4 v{V_L16}, s[{R_PHI}:{R_PHI+3}], s{S_T} offen lds', 's4')

def p1(s, isQ, isB):
    stat_rd = lambda s: s.lds(f'ds_read_b32 v{XA+9}, v{XA+8}', 'stat')
    s2a = [dma_kv(g, 's2') for g in G_S2[:5]]
    s2b = [dma_kv(g, 's2') for g in G_S2[5:]]
    s3 = [dma_quad(g, 's3') for g in G_S3] + [dma_quad(g, 's4') for g in G_S4[:2]]
    s4 = [dma_quad(g, 's4') for g in G_S4[2:]]
    if isQ: s4 += [dma_phi1]; pp = []
    else:
        s4 += [dma_by(G_E[n], n, 0, 'p') for n in range(2)]
        pp = [dma_by(G_E[n], n, 0, 'p') for n in range(2, 7)] + [dma_by(G_L[n], n, 1, 'p') for n in range(5)]
    E0 = STG
    def epi0(s, extras):
        if isQ:
            for f in extras: f(s)
            q_epi(s, E0, q0_base)
        else: sprinkle(s, gelu_ops(0), extras)
    if not isB:
        pre = {n: [xf_read(n)] for n in range(10)}
        ex = {n: [xf_read(10+2*n), xf_read(11+2*n)] for n in range(9)}
        ex[9] = [stat_rd]
        mloop(s, quad_steps(G_S0, 0, 10, True), 3, extras=ex, pre=pre)
        stamp(s, 2)
        nonce_issue(s)
        barrier(s, lg='all')
        nonce_check(s)
        for n in range(9): stg_write(n)(s)
        for f in s2a: f(s)
        consts(s, XA+9)
        barrier(s, lg='all')
        stamp(s, 3)
        mloop(s, quad_steps(G_S1, 10, 18), 3, extras=spread(s2b, 1, 2))
        epi0(s, [])
        barrier(s, vm='all', lg='all')
        stamp(s, 4)
        set_src1(s)
        mloop(s, kv_steps(False), 6, extras=spread(s3, 1, 3))
        k_epi(s)
        barrier(s, vm='s3', lg='all')
        stamp(s, 5)
        if not isQ: wg_flag(s, 0, FL_HE)
        mloop(s, quad_steps(G_S3, 0, 14), 3, extras=spread(s4, 1, 2) )
        barrier(s, vm='s4')
        stamp(s, 6)
        mloop(s, quad_steps(G_S4, 14, 14), 3, extras=spread(pp, 1, 1))
        stamp(s, 7)
    else:
        for ks in range(28): xf_read(ks)(s)
        stat_rd(s)
        stamp(s, 2)
        nonce_issue(s)
        barrier(s, lg='all')
        nonce_check(s)
        ex = spread([stg_write(n) for n in range(9)], 0, 1)
        ex = {0: [stg_write(0), stg_write(1)], 1: [stg_write(2), stg_write(3)], 2: [stg_write(4), stg_write(5)], 3: [stg_write(6), stg_write(7)], 4: [stg_write(8)]}
        for k, f in enumerate(s2a): ex.setdefault(k+2, []).append(f)
        mloop(s, quad_steps(G_S0, 0, 10), 3, extras=ex, hook=lambda s: barrier(s, lg='all'), hook_at=7)
        stamp(s, 3)
        for f in s2b: f(s)
        consts(s, XA+9)
        mloop(s, quad_steps(G_S1, 10, 18), 3, hook=lambda s: barrier(s, vm='all', lg='all'), hook_at=15)
        stamp(s, 4)
        z_flag(s)
        set_src1(s)
        epi0(s, s3)
        mloop(s, kv_steps(True), 6)
        v_epi(s)
        barrier(s, vm='all', lg='all')
        stamp(s, 5)
        kv_block(s)
        for f in s4: f(s)
        mloop(s, quad_steps(G_S3, 0, 14), 3, extras={8: [kv_flag]}, hook=lambda s: barrier(s, vm='s4', lg='all'), hook_at=11)
        stamp(s, 6)
        for f in pp: f(s)
        mloop(s, quad_steps(G_S4, 14, 14), 3)
        stamp(s, 7)

def f_tail(s, isB):
    el = [early_ld(n, t) for n in range(7) for t in range(2)]
    poll_grp(s, FL_HE)
    k = cfg.nb_early if isB else 14
    sprinkle(s, gelu_ops(1), el[:k])
    stamp(s, 8)
    barrier(s, vm='all')
    if isB:
        wg_flag(s, 4, FL_HL)
        for f in el[k:]: f(s)

def q_tail(s):
    E0 = STG; E1 = XF; KR = XF + 32; N = XF + 64; AF = ACC
    s.e(f'''s_lshl_b32 s{S_T+3}, s{S_HALF}, 3
s_add_u32 s{S_T+3}, s{S_T+3}, s{S_W}
s_lshl_b32 s{S_T}, s{S_T+3}, 11
s_add_u32 s{S_T}, s{S_T}, {WS_FL + FL_KVD*128}''')
    vpoll16(s, S_T, True, TMP + 20); s.vm = []
    s.e(f'''s_lshl_b32 s{S_T}, s{S_T+3}, 13
s_add_u32 s{S_T}, s{S_T}, {WS_KV}
s_add_u32 s{S_T+1}, s{S_T}, 4096
v_lshlrev_b32 v{TMP+20}, 2, v{V_L}''')
    for sg in range(2):
        for r in range(16):
            s.vmem(f'buffer_load_dword v{KR+16*sg+r}, v{TMP+20}, s[{R_WS}:{R_WS+3}], s{S_T+sg} offen offset:{256*r} sc1', 'kv')
    q_epi(s, E1, q1_base)
    stamp(s, 8)
    s.wait(vm='all')
    s.e(f'''v_and_b32 v{V_T}, 31, v{V_L}
v_cmp_eq_u32 vcc, 29, v{V_T}
v_mov_b32 v{V_T+1}, s{S_ONE}
s_lshl_b32 s{S_T}, s{S_W}, 12
v_add_u32 v{V_T}, s{S_T}, v{V_L16}''')
    for m in range(16):
        s.e(f'v_cvt_pk_bf16_f32 v{AF+m}, v{KR+2*m}, v{KR+2*m+1}')
        s.e(f'v_cndmask_b32 v{AF+m}, v{AF+m}, v{V_T+1}, vcc')
        if (m & 7) >= 6: s.e(f'v_cndmask_b32 v{AF+m}, v{AF+m}, 0, s[{S_HM}:{S_HM+1}]')
    for k in range(4): s.lds(f'ds_write_b128 v{V_T}, v[{AF+4*k}:{AF+4*k+3}] offset:{KVA+1024*k}', 'w')
    barrier(s, lg='all')
    s.e(f'''s_lshl_b32 s{S_T}, s{S_CG}, 13
v_add_u32 v{V_T}, s{S_T}, v{V_L16}
s_lshl_b32 s{S_T}, s{S_I}, 2
s_add_u32 s{S_T}, s{S_T}, s{S_RB}
s_lshl_b32 s{S_T}, s{S_T}, 5
s_lshl_b32 s{S_T+1}, s{S_HALF}, 4
s_add_u32 s{S_T}, s{S_T}, s{S_T+1}
s_lshl_b32 s{S_T+1}, s{S_CG}, 2
s_add_u32 s{S_T}, s{S_T}, s{S_T+1}
s_lshl_b32 s{S_T}, s{S_T}, 10
s_add_u32 s{S_T}, s{S_T}, {WS_O}
s_add_u32 s{S_T+1}, s{S_T}, 8192''')
    jobs = [(E0, 1, 0), (E0+16, 1, 1), (E1, 0, 0), (E1+16, 0, 1)]
    for n, (E, qd, t) in enumerate(jobs):
        A = ACC + 16*(n & 1)
        for k in range(4):
            s.lds(f'ds_read_b128 v[{A+4*k}:{A+4*k+3}], v{V_T} offset:{KVA + (4*qd+t)*4096 + 1024*k}', ('ka', n))
        s.wait(lg='all')
        s.e(mf(N, A, E, True)); s.e(mf(N+16, A+8, E+8, True))
        s.e(mf(N, A+4, E+4, False)); s.e(mf(N+16, A+12, E+12, False))
        T = WR; O = TMP + 8*(n & 1)
        s.e(f'''v_rcp_f32 v{T}, v{N+13}
v_rcp_f32 v{T+1}, v{N+16+13}
v_mov_b32 v{T+2}, {hx(f2u(1e-6))}
v_fmac_f32 v{T+2}, v{T}, v{N+12}
v_fmac_f32 v{T+2}, v{T+1}, v{N+16+12}
v_rcp_f32 v{T+2}, v{T+2}
v_mul_f32 v{T}, v{T}, v{T+2}
v_mul_f32 v{T+1}, v{T+1}, v{T+2}
v_mov_b32 v{T+2}, v{T}
v_mov_b32 v{T+3}, v{T+1}
v_permlane32_swap_b32 v{T}, v{T+2}
v_permlane32_swap_b32 v{T+1}, v{T+3}''')
        for r in range(16): s.e(f'v_mul_f32 v{N+r}, v{N+r}, v{T+2}')
        for r in range(16): s.e(f'v_fmac_f32 v{N+r}, v{N+16+r}, v{T+3}')
        for m in range(8): s.e(f'v_cvt_pk_bf16_f32 v{O+m}, v{N+2*m}, v{N+2*m+1}')
        s.e(f'v_cndmask_b32 v{O+6}, v{O+6}, 0, s[{S_HM}:{S_HM+1}]')
        s.e(f'v_cndmask_b32 v{O+7}, v{O+7}, 0, s[{S_HM}:{S_HM+1}]')
        for u in range(2):
            s.vmem(f'buffer_store_dwordx4 v[{O+4*u}:{O+4*u+3}], v{V_L16}, s[{R_WS}:{R_WS+3}], s{S_T+qd} offen offset:{2048*t+1024*u} sc1', 'o')
    stamp(s, 9)
    barrier(s, vm='all')
    l = opt_begin(s, f's_cmp_eq_u32 s{S_W}, 0')
    s.e(f'''s_lshr_b32 s{S_T}, s{S_WGI}, 3
s_lshl_b32 s{S_T}, s{S_T}, 7
s_add_u32 s{S_T}, s{S_T}, {WS_FL + FL_OF*128}''')
    flag_store(s, S_T)
    opt_end(s, l)
    stamp(s, 10)
    stamp_flush(s)

V_XO = 11; V_X4 = 84
def p2(s):
    s.vm = [('ae', n, t) for n in range(7) for t in range(2)]; s.lg = []
    PB = V_QR
    for n in (5, 6): dma_by(G_L[n], n, 1, 'by')(s)
    s.e(f's_lshl_b32 s{S_SRC}, s{S_JJ}, 7')
    s.e(f's_sub_u32 s{S_SRC}, s{S_SRC}, {64*896}')
    for k in range(6): dma(s, (WO0+k)*G, V_PB, R_WO, S_SRC, 64*896, 'wo')
    a = TMP
    s.e(f'''s_lshl_b32 s{S_T}, s{S_I}, 1
s_add_u32 s{S_T}, s{S_T}, s{S_HALF}
s_lshl_b32 s{S_T}, s{S_T}, 3
s_add_u32 s{S_T}, s{S_T}, s{S_W}
s_mul_i32 s{S_T}, s{S_T}, {8*896}
s_lshl_b32 s{S_T+1}, s{S_JJ}, 7
s_add_u32 s{S_T}, s{S_T}, s{S_T+1}
v_add_u32 v{V_XO}, s{S_T}, v{V_T1}
v_lshrrev_b32 v{a}, 5, v{V_L}
v_bfe_u32 v{a+1}, v{V_L}, 2, 2
v_lshl_add_u32 v{a}, v{a}, 2, v{a+1}
v_lshlrev_b32 v{a}, 7, v{a}
v_bfe_u32 v{a+1}, v{V_L}, 3, 1
v_lshl_add_u32 v{a}, v{a+1}, 6, v{a}
v_bfe_u32 v{a+1}, v{V_L}, 4, 1
v_lshl_add_u32 v{a}, v{a+1}, 5, v{a}
v_and_b32 v{a+1}, 3, v{V_L}
v_lshl_add_u32 v{a}, v{a+1}, 3, v{a}
s_lshl_b32 s{S_T}, s{S_CG}, 12
v_add_u32 v{PB[0][0]}, s{S_T}, v{a}
v_xor_b32 v{PB[1][0]}, 64, v{PB[0][0]}
v_add_u32 v{PB[0][1]}, 0x10000, v{PB[0][0]}
v_add_u32 v{PB[1][1]}, 0x10000, v{PB[1][0]}
v_add_u32 v{PB[0][2]}, 0x20000, v{PB[0][0]}
v_add_u32 v{PB[1][2]}, 0x20000, v{PB[1][0]}''')
    def ysteps(groups, base, tag, first):
        st = []
        for n in range(7):
            for t in range(2):
                f = base + 8*n + 4*t
                st.append([([la(PB[cb], groups[n]*G + t*2048 + tt*1024) for tt in range(2)],
                            (lambda w, cb=cb, f=f, z=(first and n == 0 and t == 0): mf(ACC+16*cb, w, f, z)), [(tag, n, t)], None) for cb in range(2)])
        return st
    mloop(s, ysteps(G_E, XF, 'ae', True), 3)
    stamp(s, 9)
    poll_grp(s, FL_HL)
    stamp(s, 10)
    s.e(f'''s_lshr_b32 s{S_T}, s{S_RB}, 1
s_cmp_eq_u32 s{S_T}, s{S_HALF}
s_cbranch_scc1 L_lateld
s_setprio 2
L_lateld:''')
    for n in range(7):
        s.e(f's_add_u32 s{S_T}, s{S_ORD+n}, 4096')
        for t in range(2):
            d = XF + 56 + 8*n + 4*t
            s.vmem(f'buffer_load_dwordx4 v[{d}:{d+3}], v{V_L16}, s[{R_WS}:{R_WS+3}], s{S_T} offen offset:{1024*t} sc1', ('al', n, t))
    barrier(s, vm=['by', 'wo'])
    s.e(f'''s_lshr_b32 s{S_T}, s{S_RB}, 1
s_cmp_eq_u32 s{S_T}, s{S_HALF}
s_cbranch_scc1 L_own''')
    own = s.fork()
    def ppidx(s, partner):
        s.e(f'''s_xor_b32 s{S_T}, s{S_WGI}, {8 if partner else 0}
s_lshl_b32 s{S_T}, s{S_T}, 2
s_lshl_b32 s{S_T+1}, s{S_CG}, 1
s_add_u32 s{S_T}, s{S_T}, s{S_T+1}
s_and_b32 s{S_T+1}, s{S_RB}, 1
s_add_u32 s{S_T}, s{S_T}, s{S_T+1}
s_lshl_b32 s{S_T+1}, s{S_T}, 13
s_add_u32 s{S_T+1}, s{S_T+1}, {WS_PP}
s_add_u32 s{S_T+2}, s{S_T+1}, 4096
s_lshl_b32 s{S_T}, s{S_T}, 7
s_add_u32 s{S_T+3}, s{S_T}, {WS_FL + FL_PP*128}''')
    def img_write(s, img0):
        s.e(f'''v_and_b32 v{a}, 31, v{V_L}
v_lshlrev_b32 v{a}, 8, v{a}
v_lshrrev_b32 v{a+1}, 5, v{V_L}
v_and_b32 v{a+2}, 7, v{V_L}
v_xor_b32 v{a+1}, v{a+1}, v{a+2}
v_lshl_add_u32 v{a}, v{a+1}, 4, v{a}
s_and_b32 s{S_T}, s{S_RB}, 1
s_lshl_b32 s{S_T}, s{S_T}, 13
s_lshl_b32 s{S_T+1}, s{S_CG}, 14
s_add_u32 s{S_T}, s{S_T}, s{S_T+1}
v_add_u32 v{a}, s{S_T}, v{a}
v_xor_b32 v{a+1}, 32, v{a}
v_xor_b32 v{a+2}, 64, v{a}
v_xor_b32 v{a+3}, 96, v{a}''')
        return [lambda s, cb=cb, q=q: s.lds(f'ds_write_b128 v{a+q}, v[{ACC+16*cb+4*q}:{ACC+16*cb+4*q+3}] offset:{img0*16384 + 128*cb}', 'w') for cb in range(2) for q in range(4)]
    l = opt_begin(s, f's_cmp_eq_u32 s{S_CG}, 1')
    s.e(f's_mul_i32 s{S_T}, s{S_W}, {8*896}')
    s.e(f's_sub_u32 s{S_SRC}, s{S_SRC}, s{S_T}')
    s.e(f's_add_u32 s{S_SRC}, s{S_SRC}, {56*896}')
    for k in range(8):
        s.e(f's_mov_b32 m0, {(WO0+6)*G + 1024*k}')
        s.e(f's_add_u32 s{S_SRC}, s{S_SRC}, {8*896}')
        s.e(f'buffer_load_dwordx4 v{V_PB}, s[{R_WO}:{R_WO+3}], s{S_SRC} offen lds')
    s.e('s_waitcnt vmcnt(8)')
    opt_end(s, l)
    mloop(s, ysteps(G_L, XF+56, 'al', False), 3)
    stamp(s, 11)
    ppidx(s, False)
    for k in range(8):
        s.vmem(f'buffer_store_dwordx4 v[{ACC+4*k}:{ACC+4*k+3}], v{V_L16}, s[{R_WS}:{R_WS+3}], s{S_T+1+(k>>2)} offen offset:{1024*(k&3)} sc1', 'pp')
    s.vmem(f'buffer_load_dwordx4 v[{V_X4}:{V_X4+3}], v{V_XO}, s[{R_X}:{R_X+3}], 0 offen', 'x4')
    s.wait(vm='all')
    flag_store(s, S_T+3)
    s.e(f'''s_lshl_b32 s{S_T}, s{S_I}, 1
s_add_u32 s{S_T}, s{S_T}, s{S_CG}
s_lshl_b32 s{S_T}, s{S_T}, 7
s_add_u32 s{S_T}, s{S_T}, {WS_FL + FL_OF*128}''')
    spoll(s, S_T, 1, True)
    stamp(s, 12)
    OFR = XF
    s.e(f'''s_lshl_b32 s{S_T}, s{S_I}, 1
s_add_u32 s{S_T}, s{S_T}, s{S_HALF}
s_lshl_b32 s{S_T}, s{S_T}, 1
s_and_b32 s{S_T+1}, s{S_RB}, 1
s_add_u32 s{S_T}, s{S_T}, s{S_T+1}
s_lshl_b32 s{S_T}, s{S_T}, 1
s_add_u32 s{S_T}, s{S_T}, s{S_CG}
s_lshl_b32 s{S_T}, s{S_T}, 14
s_add_u32 s{S_T}, s{S_T}, {WS_O}''')
    for n in range(16):
        if n and n % 4 == 0: s.e(f's_add_u32 s{S_T}, s{S_T}, 4096')
        s.vmem(f'buffer_load_dwordx4 v[{OFR+4*n}:{OFR+4*n+3}], v{V_L16}, s[{R_WS}:{R_WS+3}], s{S_T} offen offset:{1024*(n&3)} sc1', ('o', n))
    s.e(f'''s_mul_i32 s{S_T}, s{S_CG}, {192*128}
s_add_u32 s{S_T}, s{S_T}, {WO0*G}
v_add_u32 v{PB[0][0]}, s{S_T}, v{PB[0][0]}
v_add_u32 v{PB[1][0]}, s{S_T}, v{PB[1][0]}''')
    wr = img_write(s, 2)
    st = []
    for n in range(16):
        row = 28*(n >> 1) + 16*(n & 1)
        st.append([([(PB[cb][0], (row + 8*tt)*128) for tt in range(2)],
                    (lambda w, cb=cb, n=n: mf(ACC+16*cb, w, OFR+4*n, n == 0)), [('o', n)], None) for cb in range(2)])
    mloop(s, st, 3)
    stamp(s, 13)
    s.e('s_barrier')
    for f in wr: f(s)
    s.e('s_branch L_fin')
    s.e(';CUT')
    s = own
    s.e('L_own:')
    mloop(s, ysteps(G_L, XF+56, 'al', False), 3)
    stamp(s, 11)
    s.vmem(f'buffer_load_dwordx4 v[{V_X4}:{V_X4+3}], v{V_XO}, s[{R_X}:{R_X+3}], 0 offen', 'x4')
    ppidx(s, True)
    spoll(s, S_T+3, 1)
    stamp(s, 12)
    for k in range(8):
        s.vmem(f'buffer_load_dwordx4 v[{XF+4*k}:{XF+4*k+3}], v{V_L16}, s[{R_WS}:{R_WS+3}], s{S_T+1+(k>>2)} offen offset:{1024*(k&3)} sc1', ('pp', k))
    wr = img_write(s, 0)
    for k in range(8):
        s.wait(vm=[('pp', k)])
        for j in range(4): s.e(f'v_add_f32 v{ACC+4*k+j}, v{ACC+4*k+j}, v{XF+4*k+j}')
        wr[k](s)
    stamp(s, 13)
    s.e('s_barrier')
    s.e('L_fin:')
    s.e('s_nop 1')
    s.e(f'''v_lshrrev_b32 v{a}, 3, v{V_L}
v_and_b32 v{a+1}, 7, v{V_L}
v_lshlrev_b32 v{a+1}, 1, v{a+1}
v_xor_b32 v{a+1}, v{a+1}, v{a}
v_lshlrev_b32 v{a+1}, 4, v{a+1}
v_lshl_add_u32 v{a}, v{a}, 8, v{a+1}
s_lshl_b32 s{S_T}, s{S_W}, 11
v_add_u32 v{a+4}, s{S_T}, v{a}
v_xor_b32 v{a+5}, 16, v{a+4}
s_waitcnt vmcnt(0) lgkmcnt(0)
s_barrier''')
    s.vm = []; s.lg = []
    D = XF
    for im in range(4):
        for k in range(2):
            s.lds(f'ds_read_b128 v[{D+8*im+4*k}:{D+8*im+4*k+3}], v{a+4+k} offset:{16384*im}', ('f', im))
    X = D + 32; T = D + 40
    for j in range(4):
        s.e(f'v_lshlrev_b32 v{X+2*j}, 16, v{V_X4+j}')
        s.e(f'v_and_b32 v{X+2*j+1}, 0xffff0000, v{V_X4+j}')
    s.wait(lg=[('f', 1)])
    for j in range(8): s.e(f'v_add_f32 v{D+j}, v{D+j}, v{D+8+j}')
    for j in range(8): s.e(f'v_mul_f32 v{T+j}, {hx(f2u(-LOG2E))}, v{D+j}')
    for j in range(8): s.e(f'v_exp_f32 v{T+j}, v{T+j}')
    for j in range(8): s.e(f'v_add_f32 v{T+j}, 1.0, v{T+j}')
    for j in range(8): s.e(f'v_rcp_f32 v{T+j}, v{T+j}')
    s.wait(lg='all')
    for j in range(8): s.e(f'v_add_f32 v{D+16+j}, v{D+16+j}, v{D+24+j}')
    for j in range(8): s.e(f'v_mul_f32 v{D+j}, v{D+j}, v{T+j}')
    for j in range(8): s.e(f'v_fmac_f32 v{X+j}, v{D+j}, v{D+16+j}')
    for j in range(4): s.e(f'v_cvt_pk_bf16_f32 v{T+j}, v{X+2*j}, v{X+2*j+1}')
    s.e(f'buffer_store_dwordx4 v[{T}:{T+3}], v{V_XO}, s[{R_OUT}:{R_OUT+3}], 0 offen')
    stamp(s, 14)
    stamp_flush(s)

def build():
    uid[0] = 0
    s = Stream()
    prologue(s)
    s.e(f'''s_cmp_eq_u32 s{S_JJ}, 7
s_cbranch_scc1 L_Q
s_cmp_eq_u32 s{S_CG}, 1
s_cbranch_scc1 L_FB''')
    st = s.fork()
    fa = st.fork(); p1(fa, False, False); f_tail(fa, False); fa.e('s_branch L_P2\n;CUT\nL_FB:')
    fb = st.fork(); p1(fb, False, True); f_tail(fb, True); fb.e('L_P2:\ns_nop 1')
    p2(fb)
    fb.e('s_endpgm\n;CUT\nL_Q:')
    fb.e(f's_cmp_eq_u32 s{S_CG}, 1\ns_cbranch_scc1 L_QB')
    qa = st.fork(); p1(qa, True, False); qa.wait(vm='all'); qa.e('s_nop 7\ns_nop 7\ns_branch L_QT\n;CUT\nL_QB:')
    qb = st.fork(); p1(qb, True, True); qb.wait(vm='all'); qb.e('L_QT:')
    q_tail(qb)
    lines = hazard_pass(s.out)
    body = '\n'.join(('' if l.endswith(':') else '    ') + l for l in lines)
    hdr = open('recurrent_scan__linear_kernel_hedgehog__glu_gated_geglu__prompt.s.ref').read().split('\n')
    hdr = [l for l in hdr if l.startswith(';') and '@launch' not in l]
    return '\n'.join(hdr) + f'''
; @launch grid=(256,1,1) block=(512,1,1) lds=163840
.amdgcn_target "amdgcn-amd-amdhsa--gfx950"
.text
.globl {KN}
.p2align 8
.type {KN},@function
{KN}:
{body}
L_end:
    s_endpgm
.section .rodata,"a"
.p2align 6
.amdhsa_kernel {KN}
  .amdhsa_next_free_vgpr 256
  .amdhsa_next_free_sgpr 102
  .amdhsa_accum_offset 256
  .amdhsa_group_segment_fixed_size 0
  .amdhsa_kernarg_size 88
  .amdhsa_user_sgpr_count 2
  .amdhsa_user_sgpr_kernarg_segment_ptr 1
  .amdhsa_system_sgpr_workgroup_id_x 1
.end_amdhsa_kernel
'''

if __name__ == '__main__':
    out = sys.argv[1]
    for a in sys.argv[2:]:
        k, v = a.split('='); setattr(cfg, k, int(v))
    open(out, 'w').write(build())
```
